```python
import torch

def _softmax(x, axis=-1):
    return torch.softmax(x, dim=axis)
def _gelu(x):
    return torch.nn.functional.gelu(x, approximate="tanh")
def _silu(x):
    return torch.nn.functional.silu(x)
def _sigmoid(x):
    return torch.sigmoid(x)
def _layernorm(x, axis=-1, eps=1e-5):
    m = x.mean(dim=axis, keepdim=True)
    v = x.var(dim=axis, keepdim=True, unbiased=False)
    return (x - m) / torch.sqrt(v + eps)
def _scatter_add(tgt, idx, src, axis=0):
    return tgt.clone().index_add_(axis, idx, src)
def _segment_sum(src, seg, n):
    out = torch.zeros((n,) + src.shape[1:], dtype=src.dtype)
    return out.index_add_(0, seg, src)
def _pad(x, pw):
    flat = tuple(v for pair in reversed(pw) for v in pair)
    return torch.nn.functional.pad(x, flat)

kernel_name = 'interleave_layers__ssm_conv_s4__geglu_ffn__prompt'

def setup_inputs():

    _w = (lambda a: (lambda t: t.to(torch.bfloat16) if t.is_floating_point() else t)(torch.as_tensor(a)))
    def _A_setup():
        B, L, D, N = 1, 2048, 512, 128
        A_re = -(lambda _x: torch.exp(torch.as_tensor(_x)))((lambda *s: torch.randn(*s, dtype=torch.bfloat16) * 1.6)(D, N))
        A_im = torch.pi * (lambda *s: torch.randn(*s, dtype=torch.bfloat16) * 0.2)(D, N)
        B_re = (lambda *s: torch.randn(*s, dtype=torch.bfloat16) * 0.2)(D, N)
        B_im = (lambda *s: torch.randn(*s, dtype=torch.bfloat16) * 0.2)(D, N)
        C_re = (lambda *s: torch.randn(*s, dtype=torch.bfloat16) * 0.2)(D, N)
        C_im = (lambda *s: torch.randn(*s, dtype=torch.bfloat16) * 0.2)(D, N)
        log_dt = (lambda *s: torch.randn(*s, dtype=torch.bfloat16) * 0.2)(D) * 0.5 - 4.0
        Dskip = (lambda *s: torch.randn(*s, dtype=torch.bfloat16) * 0.2)(D)
        return {
            "u": _w((lambda *s: torch.randn(*s, dtype=torch.bfloat16) * 0.05)(B, L, D)),
            "A_re": _w(A_re),
            "A_im": _w(A_im),
            "B_re": _w(B_re),
            "B_im": _w(B_im),
            "C_re": _w(C_re),
            "C_im": _w(C_im),
            "log_dt": _w(log_dt),
            "Dskip": _w(Dskip),
        }
    _A_in = _A_setup()

    def _B_setup():
        B, S, D, F = 1, 2048, 512, 1376
        return {
            "x": _w((lambda *s: torch.randn(*s, dtype=torch.bfloat16) * 0.05)(B, S, D)),
            "w_gate": _w((lambda *s: torch.randn(*s, dtype=torch.bfloat16) * 0.05)(D, F)),
            "w_up": _w((lambda *s: torch.randn(*s, dtype=torch.bfloat16) * 0.05)(D, F)),
            "w_down": _w((lambda *s: torch.randn(*s, dtype=torch.bfloat16) * 0.05)(F, D)),
        }
    _B_in = _B_setup()

    return {
        "A_u": _A_in["u"],
        "A_A_re": _A_in["A_re"],
        "A_A_im": _A_in["A_im"],
        "A_B_re": _A_in["B_re"],
        "A_B_im": _A_in["B_im"],
        "A_C_re": _A_in["C_re"],
        "A_C_im": _A_in["C_im"],
        "A_log_dt": _A_in["log_dt"],
        "A_Dskip": _A_in["Dskip"],
        "B_x": _B_in["x"],
        "B_w_gate": _B_in["w_gate"],
        "B_w_up": _B_in["w_up"],
        "B_w_down": _B_in["w_down"],
    }

def reference(A_u, A_A_re, A_A_im, A_B_re, A_B_im, A_C_re, A_C_im, A_log_dt, A_Dskip, B_x, B_w_gate, B_w_up, B_w_down):
    def _A_ref(u, A_re, A_im, B_re, B_im, C_re, C_im, log_dt, Dskip):
        Bsz, L, D = u.shape
        dt = torch.exp(log_dt)[:, None]
        A = A_re + 1j * A_im
        Bc = B_re + 1j * B_im
        Cc = C_re + 1j * C_im
        logdA = dt * A
        dB = dt * Bc
        l = (lambda x, dt: x.to(dt))(torch.arange(L), A_re.dtype)
        P = torch.exp(logdA[:, :, None] * l[None, None, :])
        K = torch.einsum("dn,dnl,dn->dl", Cc, P, dB).real
        L2 = 2 * L
        Kp = _pad(K, ((0, 0), (0, L)))
        up = (lambda x, *d: x.permute(*d))(u, 0, 2, 1)
        up = _pad(up, ((0, 0), (0, 0), (0, L)))
        Kf = (lambda x, axes=(-2,-1): torch.fft.rfft2(x.float(), dim=axes))(Kp[:, None, :], axes=(-2, -1))
        Uf = (lambda x, axes=(-2,-1): torch.fft.rfft2(x.float(), dim=axes))(up[:, :, None, :], axes=(-2, -1))
        Yf = Uf * Kf[None, :, :, :]
        y = (lambda x, s, axes=(-2,-1): torch.fft.irfft2(x, s=s, dim=axes).to(torch.bfloat16))(Yf, (1, L2), axes=(-2, -1))[:, :, 0, :L]
        y = (lambda x, *d: x.permute(*d))(y, 0, 2, 1) + u * Dskip[None, None, :]
        return y

    def _B_ref(x, w_gate, w_up, w_down):
        return (_gelu(x @ w_gate) * (x @ w_up)) @ w_down

    x = A_u
    x = x + _A_ref(_layernorm(x, axis=-1), A_A_re, A_A_im, A_B_re, A_B_im, A_C_re, A_C_im, A_log_dt, A_Dskip)
    x = x + _B_ref(_layernorm(x, axis=-1), B_w_gate, B_w_up, B_w_down)
    x = x + _A_ref(_layernorm(x, axis=-1), A_A_re, A_A_im, A_B_re, A_B_im, A_C_re, A_C_im, A_log_dt, A_Dskip)
    x = x + _B_ref(_layernorm(x, axis=-1), B_w_gate, B_w_up, B_w_down)
    return x
```

```python
import re

TRANS = ("v_exp_f32", "v_log_f32", "v_rcp_f32", "v_rsq_f32", "v_sqrt_f32", "v_sin_f32", "v_cos_f32")
RMW = ("v_fmac_f32", "v_dot2c_f32_bf16", "v_pk_fmac", "v_writelane_b32")

def regs_of(tok):
    tok = tok.strip()
    tok = tok.lstrip("-")
    m = re.fullmatch(r"(?:abs\()?\|?([vas])(\d+)\|?\)?", tok)
    if m:
        return [m.group(1) + m.group(2)]
    m = re.fullmatch(r"([vas])\[(\d+):(\d+)\]", tok)
    if m:
        return [m.group(1) + str(i) for i in range(int(m.group(2)), int(m.group(3)) + 1)]
    if tok in ("vcc", "exec", "m0"):
        return [tok]
    if tok in ("vcc_lo", "vcc_hi"):
        return ["vcc"]
    if tok in ("exec_lo", "exec_hi"):
        return ["exec"]
    return []

class Ins:
    def __init__(self, text, tag=None):
        self.text = text
        self.tag = tag
        t = text.split(";")[0].strip()
        parts = t.split(None, 1)
        self.op = parts[0]
        rest = parts[1] if len(parts) > 1 else ""
        ops, depth, cur = [], 0, ""
        for ch in rest:
            if ch in "[(":
                depth += 1
            if ch in "])":
                depth -= 1
            if ch == "," and depth == 0:
                ops.append(cur.strip()); cur = ""
            else:
                cur += ch
        if cur.strip():
            ops.append(cur.strip())
        self.mods = ""
        if ops:
            last = ops[-1].split(None, 1)
            ops[-1] = last[0]
            if len(last) > 1:
                self.mods = last[1]
        self.ops = ops
        op = self.op
        R = [regs_of(o) for o in ops]
        flat = lambda l: [x for y in l for x in y]
        self.kind = "other"; self.w = []; self.r = []; self.ab = []; self.c = []
        self.dma = False; self.widestore = False; self.data = []
        if op.startswith("v_mfma"):
            self.kind = "mfma"
            self.passes = 8 if "32x32x16" in op else 4
            assert "32x32x16" in op or "16x16x32" in op
            self.w = R[0]; self.ab = R[1] + R[2]; self.c = R[3]; self.r = self.ab + self.c
        elif op.startswith("v_"):
            self.kind = "valu"
            self.trans = op.startswith(TRANS)
            self.dpp = "_dpp" in op
            self.perml = op.startswith("v_permlane")
            self.rdl = op.startswith(("v_readlane", "v_readfirstlane"))
            self.dot = op.startswith("v_dot")
            if op == "v_nop":
                pass
            elif self.perml:
                self.w = R[0] + R[1]; self.r = R[0] + R[1]
            elif op.startswith(("v_add_co", "v_sub_co", "v_addc_co", "v_subb_co", "v_mad_u64")):
                self.w = R[0] + R[1]; self.r = flat(R[2:])
            else:
                self.w = R[0]; self.r = flat(R[1:])
                if op.startswith(RMW) or self.dpp:
                    self.r = self.r + R[0]
            assert not op.startswith("v_cmpx")
        elif op.startswith(("buffer_", "global_")):
            self.kind = "vmem"
            if op.startswith(("buffer_wbl2", "buffer_inv")):
                pass
            elif "lds" in self.mods.split() or "load_lds" in op:
                self.dma = True; self.r = flat(R) + ["m0"]
            elif "_load_" in op:
                self.w = R[0]; self.r = flat(R[1:])
            elif "atomic" in op and "sc0" in self.mods.split():
                assert op.startswith("buffer_")
                self.w = R[0]; self.r = flat(R)
            else:
                self.r = flat(R)
                if op.endswith(("x3", "x4")):
                    self.widestore = True
                    self.data = R[0] if op.startswith("buffer_") else R[1]
        elif op.startswith("ds_"):
            self.kind = "ds"
            if op.startswith(("ds_read", "ds_bpermute", "ds_swizzle", "ds_permute")):
                self.w = R[0]; self.r = flat(R[1:])
            else:
                self.r = flat(R)
        elif op.startswith(("s_load", "s_memtime", "s_memrealtime", "s_buffer_load")):
            self.kind = "smem"; self.w = R[0]; self.r = flat(R[1:])
        elif op.startswith("s_"):
            self.kind = "salu"
            if op in ("s_waitcnt", "s_nop", "s_barrier", "s_endpgm", "s_sleep", "s_setprio") or "branch" in op:
                pass
            elif op.startswith("s_cmp") or op.startswith("s_bitcmp"):
                self.r = flat(R)
            else:
                self.w = R[0]; self.r = flat(R[1:])
                if "saveexec" in op:
                    self.w = self.w + ["exec"]; self.r = self.r + ["exec"]
                if op in ("s_addk_i32", "s_mulk_i32"):
                    self.r = self.r + R[0]
        else:
            raise ValueError("unknown instr " + text)

    def states(self):
        if self.op == "s_nop":
            return int(self.ops[0], 0) + 1
        return 1

def need(p, c):
    n = 0
    pw = set(p.w)
    if p.kind == "valu":
        vw = {x for x in pw if x[0] in "va" and x != "vcc"}
        sw = {x for x in pw if x[0] == "s" or x == "vcc"}
        if c.kind == "mfma" and vw & set(c.r): n = max(n, 2)
        if c.kind == "valu":
            hit = vw & set(c.r)
            if hit and (c.dpp or c.perml): n = max(n, 2)
            if hit and c.rdl: n = max(n, 1)
            if hit and p.trans: n = max(n, 1)
            if p.dot and (hit or vw & set(c.w)): n = max(n, 3)
            if sw & set(c.r): n = max(n, 4 if c.rdl or c.op.startswith("v_writelane") else 2)
        if c.kind in ("vmem", "ds"):
            if sw & set(c.r): n = max(n, 5)
            if vw & set(c.r) and (p.trans or p.dot): n = max(n, 3 if p.dot else 1)
    if p.kind == "mfma":
        far = 8 if p.passes == 4 else 12
        if c.kind == "mfma":
            if pw & set(c.ab): n = max(n, far)
            if pw & set(c.c):
                if not (p.w == c.c and p.passes == c.passes): n = max(n, far - 2)
            elif pw & set(c.w): n = max(n, far)
        elif c.kind in ("valu", "vmem", "ds"):
            if pw & (set(c.r) | set(c.w)): n = max(n, far)
            if c.kind == "valu" and set(p.c) & set(c.w): n = max(n, 3 if p.passes == 4 else 7)
    if p.kind == "salu" and "m0" in pw and c.kind == "vmem" and c.dma: n = max(n, 1)
    if p.kind == "vmem" and p.widestore and set(p.data) & set(c.w):
        n = max(n, 2)
    return n

class State:
    def __init__(self):
        self.vm = []
        self.lg = []
        self.hist = []
    def copy(self):
        s = State(); s.vm = list(self.vm); s.lg = list(self.lg); s.hist = list(self.hist); return s

class Asm:
    def __init__(self):
        self.items = []
    def __call__(self, text, tag=None):
        for line in text.strip().split("\n"):
            line = line.strip()
            if not line or line.startswith(";"):
                continue
            self.items.append(("i", Ins(line, tag)))
    def raw(self, text):
        self.items.append(("raw", text))
    def label(self, name, loop=False):
        self.items.append(("label", name, loop))
    def entry(self, name):
        self.items.append(("entry", name))
    def wait_tag(self, tag):
        self.items.append(("wtag", tag))
    def comment(self, t):
        self.items.append(("raw", "    ; " + t))

    def finalize(self):
        out = []
        st = State()
        snaps = {}
        dead = False
        self.nops = 0
        def emit(ins):
            dist = 0; req = 0
            for p in reversed(st.hist):
                n = need(p, ins) - dist
                req = max(req, n)
                dist += p.states()
                if dist > 20: break
            if req > 0:
                nop = Ins("s_nop %d" % (req - 1))
                out.append("    " + nop.text); st.hist.append(nop); self.nops += req
            out.append("    " + ins.text)
            st.hist.append(ins)
            if len(st.hist) > 24: del st.hist[0]
        def do_wait(vm=None, lg=None):
            parts = []
            if vm is not None:
                vm = min(vm, 63); parts.append("vmcnt(%d)" % vm)
                while len(st.vm) > vm: st.vm.pop(0)
            if lg is not None:
                lg = min(lg, 15); parts.append("lgkmcnt(%d)" % lg)
                while len(st.lg) > lg: st.lg.pop(0)
            emit(Ins("s_waitcnt " + " ".join(parts)))
        for it in self.items:
            if it[0] == "raw":
                out.append(it[1]); continue
            if it[0] == "entry":
                st = State(); dead = False
                out.append(".p2align 8\n.globl %s\n.type %s,@function\n%s:" % (it[1], it[1], it[1])); continue
            if it[0] == "label":
                name = it[1]
                if dead:
                    assert name in snaps, "label %s unreachable" % name
                    st = snaps[name].copy(); dead = False
                elif name in snaps:
                    o = snaps[name]
                    key = lambda q: [tuple(x.w) for x in q]
                    assert key(o.vm) == key(st.vm) and key(o.lg) == key(st.lg), "join mismatch at " + name
                out.append(name + ":")
                if it[2]:
                    snaps["loop:" + name] = st.copy()
                continue
            if it[0] == "wtag":
                idx = [i for i, x in enumerate(st.vm) if x.tag == it[1]]
                if idx:
                    do_wait(vm=len(st.vm) - 1 - idx[-1])
                continue
            ins = it[1]
            assert not dead, "dead code: " + ins.text
            if ins.op == "s_waitcnt":
                m = re.search(r"vmcnt\((\d+)\)", ins.text); vm = int(m.group(1)) if m else None
                m = re.search(r"lgkmcnt\((\d+)\)", ins.text); lg = int(m.group(1)) if m else None
                do_wait(vm, lg); continue
            touched = set(ins.r) | set(ins.w)
            vm = lg = None
            idx = [i for i, x in enumerate(st.vm) if touched & set(x.w)]
            if idx: vm = len(st.vm) - 1 - idx[-1]
            idx = [i for i, x in enumerate(st.lg) if touched & set(x.w)]
            if idx:
                lg = len(st.lg) - 1 - idx[-1]
                if any(x.kind == "smem" for x in st.lg): lg = 0
            if vm is not None or lg is not None:
                do_wait(vm, lg)
            if "branch" in ins.op:
                dist = 0; req = 0
                for p in reversed(st.hist):
                    mx = 0
                    if p.kind == "mfma": mx = 8 if p.passes == 4 else 12
                    elif p.kind == "valu": mx = 5 if any(x[0] == "s" or x == "vcc" for x in p.w) else (3 if p.dot else 2)
                    elif p.kind == "vmem" and p.widestore: mx = 2
                    elif p.kind == "salu" and "m0" in p.w: mx = 1
                    req = max(req, mx - dist - 1)
                    dist += p.states()
                if req > 0:
                    emit(Ins("s_nop %d" % (req - 1)))
            emit(ins)
            if ins.kind == "vmem": st.vm.append(ins)
            if ins.kind in ("ds", "smem"): st.lg.append(ins)
            if "branch" in ins.op:
                tgt = ins.ops[0]
                if "loop:" + tgt in snaps:
                    o = snaps["loop:" + tgt]
                    key = lambda q: [tuple(x.w) for x in q]
                    a, b = key(st.vm), key(o.vm)
                    assert a == b[len(b) - len(a):] if a else True, "loop vm mismatch " + tgt
                    a, b = key(st.lg), key(o.lg)
                    assert a == b[len(b) - len(a):] if a else True, "loop lg mismatch " + tgt
                elif tgt in snaps:
                    o = snaps[tgt]
                    key = lambda q: [tuple(x.w) for x in q]
                    if len(st.vm) + len(st.lg) > len(o.vm) + len(o.lg): snaps[tgt] = st.copy()
                else:
                    snaps[tgt] = st.copy()
                if ins.op == "s_branch": dead = True
            if ins.op == "s_endpgm": dead = True
        return "\n".join(out) + "\n"
```

```python
import math, struct
MB = 1 << 20
XT = [0, 2 * MB, 4 * MB, 6 * MB]
HB = [8 * MB, 14 * MB]
KR = 20 * MB
KROW = 8320
KODD = 4160
WGU = 25 * MB
WD = 28 * MB
CSP = 30 * MB
ST = 31 * MB
FLAGS = 31 * MB + 512 * 1024
WS_SIZE = 32 * MB
ARG = dict(u=0, are=8, aim=16, bre=24, bim=32, cre=40, cim=48, ldt=56, dsk=64, wg=80, wu=88, wd=96, out=104, dbg=112, ws=120)
LOG2E = math.log2(math.e)
def f2u(x):
    return struct.unpack("<I", struct.pack("<f", x))[0]
def fl(x):
    return "0x%08x" % f2u(x)
def vr(b, n=1, p="v"):
    return "%s%d" % (p, b) if n == 1 else "%s[%d:%d]" % (p, b, b + n - 1)
def ar(b, n=1):
    return vr(b, n, "a")
def sr(b, n=1):
    return vr(b, n, "s")
def srd(a, d, base, size):
    a(f"s_mov_b32 s{d}, s{base}")
    a(f"s_and_b32 s{d+1}, s{base+1}, 0xffff")
    a(f"s_mov_b32 s{d+2}, {size}")
    a(f"s_mov_b32 s{d+3}, 0x00020000")
```

```python
from common import *
CU = 0
CUS = 4608
CX = 9216
CRED = 17408
CONV_LDS = 33792

def conv_kernel(a, name, layer):
    xin, xout = XT[2 * layer], XT[2 * layer + 1]
    st = ST + 16384 * layer
    a.entry(name)
    a("s_cmp_ge_u32 s2, 256")
    a(f"s_cbranch_scc1 {name}_end")
    a("s_load_dwordx2 s[24:25], s[0:1], 120")
    a("s_load_dwordx2 s[4:5], s[0:1], 64")
    a("v_lshrrev_b32 v1, 6, v0")
    a("v_and_b32 v2, 63, v0")
    a("v_readfirstlane_b32 s3, v1")
    a("v_lshlrev_b32 v3, 4, v0")
    a("v_lshlrev_b32 v4, 3, v0")
    a("s_lshl_b32 s6, s2, 13")
    a(f"s_add_u32 s7, s6, {xin}")
    a("s_add_u32 s8, s7, 4096")
    a(f"s_mov_b32 s9, {st}")
    a(f"s_mov_b32 s10, {st+4096}")
    a(f"s_mov_b32 s11, {st+8192}")
    a(f"s_mov_b32 s12, {st+12288}")
    a("s_lshr_b32 s13, s3, 1")
    a("s_and_b32 s14, s3, 1")
    a("v_and_b32 v5, 15, v2")
    a("v_lshrrev_b32 v6, 4, v2")
    a("v_lshlrev_b32 v7, 3, v6")
    a("v_sub_u32 v7, v7, v5")
    a(f"v_add_u32 v7, {2031-32*59}, v7")
    a("s_lshl_b32 s15, s14, 7")
    a("v_subrev_u32 v7, s15, v7")
    a("v_and_b32 v8, 1, v7")
    a(f"v_mul_u32_u24 v8, {KODD-2}, v8")
    a("v_lshl_add_u32 v7, v7, 1, v8")
    a("s_lshl_b32 s16, s2, 1")
    a("s_add_u32 s16, s16, s13")
    a(f"s_mul_i32 s17, s16, {KROW}")
    a(f"s_add_u32 s17, s17, {KR}")
    srd(a, 20, 24, WS_SIZE)
    a("buffer_load_dwordx4 v[16:19], v3, s[20:23], s9 offen")
    a("buffer_load_dwordx4 v[24:27], v3, s[20:23], s11 offen")
    a("buffer_load_dwordx2 v[32:33], v4, s[20:23], s7 offen")
    a("buffer_load_dwordx2 v[36:37], v4, s[20:23], s8 offen")
    a("buffer_load_dwordx4 v[20:23], v3, s[20:23], s10 offen")
    a("buffer_load_dwordx4 v[28:31], v3, s[20:23], s12 offen")
    a("buffer_load_dwordx2 v[34:35], v4, s[20:23], s7 offen offset:2048")
    a("buffer_load_dwordx2 v[38:39], v4, s[20:23], s8 offen offset:2048")
    a("s_lshl_b32 s18, s16, 1")
    a("v_mov_b32 v9, s18")
    a("global_load_ushort v9, v9, s[4:5]")
    F = lambda mm, q: 32 * mm + 4 * q
    for mm in range(4):
        for q in range(8):
            off = 64 * ((3 - mm) + 8 * (7 - q))
            a(f"buffer_load_dwordx4 {ar(F(mm,q),4)}, v7, s[20:23], s17 offen offset:{off}")
    a("v_lshrrev_b32 v10, 7, v0")
    a(f"v_mul_u32_u24 v10, {CUS}, v10")
    a("v_and_b32 v11, 127, v0")
    a("v_lshl_add_u32 v10, v11, 2, v10")
    a("v_mov_b32 v11, 0")
    a(f"ds_write_b32 v10, v11 offset:{CU}")
    a("v_lshlrev_b32 v10, 5, v5")
    a("v_lshl_add_u32 v10, v6, 4, v10")
    a(f"s_mul_i32 s18, s13, {CUS}")
    a("s_lshl_b32 s19, s14, 8")
    a("s_sub_u32 s18, s18, s19")
    a(f"s_add_u32 s18, s18, {CU + 2*(256-96-16)}")
    a("v_add_u32 v10, s18, v10")
    a("v_lshlrev_b32 v11, 5, v5")
    a("v_lshl_add_u32 v11, v6, 3, v11")
    a("s_lshl_b32 s19, s14, 11")
    a("v_add_u32 v11, s19, v11")
    a(f"s_mul_i32 s18, s13, {CUS}")
    a("v_add_u32 v12, s18, v11")
    a("s_lshl_b32 s18, s13, 12")
    a("v_add_u32 v13, s18, v11")
    a(f"s_mov_b32 s26, {fl(1/512)}")
    a(f"s_mov_b32 s28, {fl(1e-5)}")
    a("v_mov_b32 v14, s28")
    a("v_mov_b32 v15, s28")
    for h in range(2):
        for p in range(2):
            s, q = 16 + 4 * h + 2 * p, 24 + 4 * h + 2 * p
            a(f"v_pk_mul_f32 {vr(s,2)}, {vr(s,2)}, s[26:27] op_sel_hi:[1,0]")
            a(f"v_pk_fma_f32 {vr(q,2)}, {vr(q,2)}, s[26:27], v[14:15] op_sel_hi:[1,0,1]")
            a(f"v_pk_fma_f32 {vr(q,2)}, {vr(s,2)}, {vr(s,2)}, {vr(q,2)} neg_lo:[1,0,0] neg_hi:[1,0,0]")
            a(f"v_max_f32 v{q}, s28, v{q}")
            a(f"v_max_f32 v{q+1}, s28, v{q+1}")
            a(f"v_rsq_f32 v{q}, v{q}")
            a(f"v_rsq_f32 v{q+1}, v{q+1}")
        for p in range(2):
            s, q = 16 + 4 * h + 2 * p, 24 + 4 * h + 2 * p
            a(f"v_pk_mul_f32 {vr(s,2)}, {vr(s,2)}, {vr(q,2)} neg_lo:[1,0] neg_hi:[1,0]")
        for c in range(2):
            x = 32 + 4 * c + 2 * h
            a(f"ds_write_b64 v4, {vr(x,2)} offset:{CX + 4096*c + 2048*h}")
            for p in range(2):
                s, q = 16 + 4 * h + 2 * p, 24 + 4 * h + 2 * p
                t = 40 + 4 * c + 2 * p
                a(f"v_lshlrev_b32 v{t}, 16, v{x+p}")
                a(f"v_and_b32 v{t+1}, 0xffff0000, v{x+p}")
                a(f"v_pk_fma_f32 {vr(t,2)}, {vr(t,2)}, {vr(q,2)}, {vr(s,2)}")
            o = 48 + 4 * h + 2 * c
            a(f"v_cvt_pk_bf16_f32 v{o}, v{40+4*c}, v{41+4*c}")
            a(f"v_cvt_pk_bf16_f32 v{o+1}, v{42+4*c}, v{43+4*c}")
            a(f"ds_write_b64 v4, {vr(o,2)} offset:{CU + CUS*c + 512 + 2048*h}")
    a("s_waitcnt lgkmcnt(0)")
    a("s_barrier")
    ACC = lambda n: 64 + 4 * n
    G = lambda j: 96 + 4 * j
    def rdG(mm, j):
        a(f"ds_read_b128 {vr(G(j),4)}, v10 offset:{512*j + 64*(3-mm)}")
    for j in range(8):
        rdG(0, j)
    for n in range(4):
        a(f"ds_read_b64 {vr(16+2*n,2)}, v12 offset:{CU+512+512*n}")
        a(f"ds_read_b64 {vr(24+2*n,2)}, v13 offset:{CX+512*n}")
    fill = []
    fill.append("v_lshlrev_b32 v9, 16, v9")
    for k in range(8):
        fill.append(f"v_lshlrev_b32 v{32+2*k}, 16, v{24+k}")
        fill.append(f"v_and_b32 v{33+2*k}, 0xffff0000, v{24+k}")
        fill.append(f"v_lshlrev_b32 v48, 16, v{16+k}")
        fill.append(f"v_and_b32 v49, 0xffff0000, v{16+k}")
        fill.append(f"v_fmac_f32 v{32+2*k}, v9, v48")
        fill.append(f"v_fmac_f32 v{33+2*k}, v9, v49")
    fill.append("v_lshlrev_b32 v50, 4, v2")
    fill.append("s_lshl_b32 s18, s3, 12")
    fill.append("v_add_u32 v51, s18, v50")
    fill.append("s_xor_b32 s18, s18, 4096")
    fill.append("v_add_u32 v50, s18, v50")
    fill.append("v_lshlrev_b32 v52, 5, v5")
    fill.append("v_and_b32 v53, 1, v6")
    fill.append("v_lshl_add_u32 v52, v53, 9, v52")
    fill.append("v_lshrrev_b32 v53, 1, v6")
    fill.append("v_lshl_add_u32 v52, v53, 4, v52")
    fill.append("s_lshl_b32 s18, s16, 12")
    fill.append("s_lshl_b32 s19, s14, 11")
    fill.append("s_add_u32 s18, s18, s19")
    fill.append(f"s_add_u32 s18, s18, {xout}")
    cnt = 0
    for mm in range(4):
        for j in range(8):
            for q in range(8 - j):
                n = j + q
                c = "0" if (mm == 0 and j == 0) else vr(ACC(n), 4)
                a(f"v_mfma_f32_16x16x32_bf16 {vr(ACC(n),4)}, {ar(F(mm,q),4)}, {vr(G(j),4)}, {c}")
                cnt += 1
                if cnt > 40 and fill:
                    a(fill.pop(0))
            if mm < 3:
                rdG(mm + 1, j)
    assert not fill
    a("s_cmp_eq_u32 s14, 0")
    a(f"s_cbranch_scc1 {name}_h0")
    for hf in (1, 0):
        own, oth = 4 * hf, 4 - 4 * hf
        if hf == 0:
            a.label(f"{name}_h0")
        for n in range(4):
            a(f"ds_write_b128 v51, {vr(ACC(oth+n),4)} offset:{CRED+1024*n}")
        for n in range(4):
            for p in range(2):
                a(f"v_pk_add_f32 {vr(32+4*n+2*p,2)}, {vr(32+4*n+2*p,2)}, {vr(ACC(own+n)+2*p,2)}")
        a("s_waitcnt lgkmcnt(0)")
        if hf == 1:
            a(f"s_branch {name}_j")
    a.label(f"{name}_j")
    a("s_barrier")
    for n in range(4):
        a(f"ds_read_b128 {vr(96+4*n,4)}, v50 offset:{CRED+1024*n}")
    for pr in range(2):
        o = 16 + 4 * pr
        for k in range(2):
            n = 2 * pr + k
            for p in range(2):
                a(f"v_pk_add_f32 {vr(32+4*n+2*p,2)}, {vr(32+4*n+2*p,2)}, {vr(96+4*n+2*p,2)}")
            a(f"v_cvt_pk_bf16_f32 v{o+2*k}, v{32+4*n}, v{33+4*n}")
            a(f"v_cvt_pk_bf16_f32 v{o+2*k+1}, v{34+4*n}, v{35+4*n}")
        a(f"v_permlane16_swap_b32 v{o}, v{o+2}")
        a(f"v_permlane16_swap_b32 v{o+1}, v{o+3}")
        a(f"buffer_store_dwordx4 {vr(o,4)}, v52, s[20:23], s18 offen offset:{1024*pr}")
    a("s_endpgm")
    a.label(f"{name}_end")
    a("s_endpgm")
```

```python
from common import *
G1X = 0
G1S = 131072
G1_LDS = 131072 + 1024
C1 = -2.0 * 0.7978845608028654 * LOG2E
C2 = C1 * 0.044715

def g1_map(a):
    a("s_and_b32 s4, s2, 3")
    a("s_lshl_b32 s4, s4, 2")
    a("s_bfe_u32 s5, s2, 0x20003")
    a("s_add_u32 s5, s5, s4")
    a("s_bfe_u32 s4, s2, 0x10002")
    a("s_lshl_b32 s4, s4, 3")
    a("s_lshr_b32 s6, s2, 5")
    a("s_add_u32 s4, s4, s6")

def g1_kernel(a, name, layer):
    xin, hout = XT[2 * layer + 1], HB[layer]
    a.entry(name)
    a("s_cmp_ge_u32 s2, 256")
    a(f"s_cbranch_scc1 {name}_end")
    a("s_load_dwordx2 s[24:25], s[0:1], 120")
    a("v_lshrrev_b32 v1, 6, v0")
    a("v_and_b32 v2, 63, v0")
    a("v_readfirstlane_b32 s3, v1")
    g1_map(a)
    a("v_and_b32 v5, 15, v2")
    a("v_lshrrev_b32 v6, 4, v2")
    for e in range(2):
        a(f"v_add_u32 v7, {4*e}, v6")
        a("v_lshlrev_b32 v8, 1, v7")
        a("v_xor_b32 v8, v8, v5")
        a("v_lshlrev_b32 v8, 4, v8")
        a(f"v_lshl_add_u32 v{3+e}, v7, 12, v8")
    a("s_lshl_b32 s6, s3, 15")
    a("s_lshl_b32 s7, s4, 8")
    a("s_add_u32 s6, s6, s7")
    a(f"s_add_u32 s6, s6, {xin}")
    a("s_lshl_b32 s7, s3, 11")
    a("s_mul_i32 s8, s5, 11")
    a("s_mul_i32 s9, s3, 3")
    a("s_add_u32 s12, s8, s9")
    a("s_lshl_b32 s8, s12, 14")
    a(f"s_add_u32 s8, s8, {WGU}")
    a("v_lshlrev_b32 v7, 4, v2")
    a("v_mul_u32_u24 v8, 704, v5")
    a("v_lshl_add_u32 v8, v6, 4, v8")
    a(f"s_mul_i32 s10, s5, {16*704}")
    a("s_mul_i32 s11, s3, 192")
    a("s_add_u32 s10, s10, s11")
    a(f"s_add_u32 s10, s10, {CSP}")
    a("v_lshrrev_b32 v9, 2, v2")
    a("v_and_b32 v18, 7, v9")
    a("v_and_b32 v19, 3, v2")
    a("v_lshlrev_b32 v19, 3, v19")
    a("v_lshl_add_u32 v19, v9, 8, v19")
    for tb in range(8):
        a(f"v_xor_b32 v9, {tb}, v18")
        a(f"v_lshl_add_u32 v{10+tb}, v9, 5, v19")
    srd(a, 20, 24, WS_SIZE)
    a("s_cmp_eq_u32 s3, 3")
    a(f"s_cbranch_scc1 {name}_w3")
    for w3 in (0, 1):
        if w3:
            a.label(f"{name}_w3")
        g1_body(a, name, w3, hout)
    a.label(f"{name}_end")
    a("s_endpgm")

def g1_body(a, name, w3, hout):
    NB = 2 if w3 else 3
    W = lambda b, ks: 12 * ks + 4 * b
    ACC = lambda b, tb: 128 + 32 * b + 4 * tb
    X = lambda s, tb: 64 + 32 * s + 4 * tb
    CS = 20
    def issue(ks):
        out = []
        for e in range(2):
            out.append((f"s_add_u32 m0, s7, {8192*ks + 1024*e}", None))
            out.append((f"s_add_u32 s13, s6, {ks*32*4096}", None))
            out.append((f"buffer_load_dwordx4 v{3+e}, s[20:23], s13 offen lds", f"x{ks//2}"))
        for b in range(NB):
            out.append((f"s_add_u32 s14, s8, {b*16384 + (ks//4)*4096}", None))
            out.append((f"buffer_load_dwordx4 {ar(W(b,ks),4)}, v7, s[20:23], s14 offen offset:{(ks%4)*1024}", None))
        return out
    PRE = 8
    for ks in range(PRE):
        for t, tag in issue(ks):
            a(t, tag)
    for b in range(NB):
        a(f"buffer_load_dwordx4 {vr(CS+4*b,4)}, v8, s[20:23], s10 offen offset:{64*b}")
    def rdX(ks, tb):
        off = (ks % 8) * 8192
        s = ks & 1
        return [f"ds_read_b64_tr_b16 {vr(X(s,tb),2)}, v{10+tb} offset:{off}",
                f"ds_read_b64_tr_b16 {vr(X(s,tb)+2,2)}, v{10+tb} offset:{off+4096}"]
    a.wait_tag("x0")
    a("s_barrier")
    for tb in range(8):
        for t in rdX(0, tb): a(t)
    late = []
    for k in (8, 4, 2, 1):
        for i in range(4 * NB):
            late.append(f"v_add_f32_dpp v{CS+i}, v{CS+i}, v{CS+i} row_ror:{k} row_mask:0xf bank_mask:0xf")
    for ks in range(16):
        fill = []
        if ks + PRE < 16:
            fill = issue(ks + PRE)
        elif ks >= 10:
            n = (len(late) + (15 - ks) - 1) // max(15 - ks, 1) if ks < 15 else len(late)
            fill = [(late.pop(0), None) for _ in range(min(n, len(late)))]
        if ks % 2 == 1 and ks < 15:
            a.wait_tag(f"x{(ks+1)//2}")
            a("s_barrier")
        for tb in range(8):
            for b in range(3):
                c = "0" if ks == 0 else vr(ACC(b, tb), 4)
                A = ar(W(b, ks), 4) if b < NB else vr(X(ks & 1, tb), 4)
                a(f"v_mfma_f32_16x16x32_bf16 {vr(ACC(b,tb),4)}, {A}, {vr(X(ks&1,tb),4)}, {c}")
                if ks < 15:
                    if b == 0 and ks == 7:
                        a(f"v_add_u32 v{10+tb}, 0x10000, v{10+tb}")
                    if b >= 1:
                        a(rdX(ks + 1, tb)[b - 1])
                if b == 0:
                    for _ in range(2):
                        if fill:
                            t, tag = fill.pop(0); a(t, tag)
        assert not fill
    assert not late
    SM, SQ = 64, 72
    SD = 80
    a("v_lshlrev_b32 v9, 5, v5")
    a(f"v_add_u32 v9, {G1S}, v9")
    if w3:
        a("v_and_b32 v18, 3, v5")
        a("v_cmp_eq_u32 s[14:15], 1, v18")
        a("v_cmp_eq_u32 s[16:17], 2, v18")
        a("v_cmp_eq_u32 s[18:19], 3, v18")
        for tb in range(8):
            g = ACC(2, tb)
            a(f"v_cndmask_b32 v{SQ+tb}, v{g}, v{g+1}, s[14:15]")
            a(f"v_cndmask_b32 v{SQ+tb}, v{SQ+tb}, v{g+2}, s[16:17]")
            a(f"v_cndmask_b32 v{SQ+tb}, v{SQ+tb}, v{g+3}, s[18:19]")
            a(f"v_mov_b32 v{SM+tb}, v{ACC(1,tb)}")
        a("s_mov_b32 s14, 0x00f0000f")
        a("s_mov_b32 s15, 0xf0000f00")
        a("s_mov_b64 exec, s[14:15]")
        a(f"ds_write_b128 v9, {vr(SQ,4)} offset:512")
        a(f"ds_write_b128 v9, {vr(SQ+4,4)} offset:528")
        a("s_mov_b32 s14, 0")
        a("s_mov_b32 s15, 0xffff0000")
        a("s_mov_b64 exec, s[14:15]")
        a(f"ds_write_b128 v9, {vr(SM,4)}")
        a(f"ds_write_b128 v9, {vr(SM+4,4)} offset:16")
        a("s_mov_b64 exec, -1")
        a("s_waitcnt lgkmcnt(0)")
    a("s_barrier")
    a(f"ds_read_b128 {vr(SM,4)}, v9")
    a(f"ds_read_b128 {vr(SQ,4)}, v9 offset:512")
    a(f"ds_read_b128 {vr(SM+4,4)}, v9 offset:16")
    a(f"ds_read_b128 {vr(SQ+4,4)}, v9 offset:528")
    a(f"s_mov_b32 s26, {fl(1/512)}")
    a(f"s_mov_b32 s28, {fl(1e-5)}")
    a(f"s_mov_b32 s30, {fl(C2)}")
    a(f"v_mov_b32 v18, s28")
    a(f"v_mov_b32 v19, {fl(C1)}")
    a("s_lshl_b32 s12, s12, 15")
    a("s_lshl_b32 s13, s4, 11")
    a("s_add_u32 s12, s12, s13")
    a(f"s_add_u32 s12, s12, {hout}")
    for p in range(4):
        s, q, d = SM + 2 * p, SQ + 2 * p, SD + 2 * p
        a(f"v_pk_mul_f32 {vr(s,2)}, {vr(s,2)}, s[26:27] op_sel_hi:[1,0] neg_lo:[1,0] neg_hi:[1,0]")
        a(f"v_pk_fma_f32 {vr(d,2)}, {vr(q,2)}, s[26:27], v[18:19] op_sel_hi:[1,0,0]")
        a(f"v_pk_fma_f32 {vr(d,2)}, {vr(s,2)}, {vr(s,2)}, {vr(d,2)} neg_lo:[1,0,0] neg_hi:[1,0,0]")
        a(f"v_max_f32 v{d}, s28, v{d}")
        a(f"v_max_f32 v{d+1}, s28, v{d+1}")
        a(f"v_rsq_f32 v{q}, v{d}")
        a(f"v_rsq_f32 v{q+1}, v{d+1}")
        a(f"v_pk_mul_f32 {vr(d,2)}, {vr(d,2)}, {vr(q,2)}")
    def bc(base, tb):
        return vr(base + (tb & ~1), 2), tb & 1
    for b in range(NB):
        for grp in range(2):
            O = 96 + 4 * ((2 * b + grp) & 1)
            for pair in range(2):
                seqs = []
                for k in range(2):
                    tb = 4 * grp + 2 * pair + k
                    A = ACC(b, tb); T = 104 + 4 * k
                    m, ms = bc(SM, tb); r, rs = bc(SQ, tb); d, ds = bc(SD, tb)
                    seqs.append([
                        f"v_pk_fma_f32 {vr(A,2)}, {vr(CS+4*b,2)}, {m}, {vr(A,2)} op_sel:[0,{ms},0] op_sel_hi:[1,{ms},1]",
                        f"v_pk_fma_f32 {vr(A+2,2)}, {vr(CS+4*b+2,2)}, {m}, {vr(A+2,2)} op_sel:[0,{ms},0] op_sel_hi:[1,{ms},1]",
                        f"v_pk_mul_f32 {vr(A,2)}, {vr(A,2)}, {r} op_sel:[0,{rs}] op_sel_hi:[1,{rs}]",
                        f"v_pk_mul_f32 {vr(T,2)}, {vr(A,2)}, {vr(A,2)}",
                        f"v_pk_fma_f32 {vr(T,2)}, {vr(T,2)}, s[30:31], v[18:19] op_sel:[0,0,1] op_sel_hi:[1,0,1]",
                        f"v_pk_mul_f32 {vr(T,2)}, {vr(T,2)}, {vr(A,2)}",
                        f"v_exp_f32 v{T}, v{T}",
                        f"v_exp_f32 v{T+1}, v{T+1}",
                        f"v_pk_mul_f32 {vr(A,2)}, {vr(A,2)}, {vr(A+2,2)}",
                        f"v_pk_fma_f32 {vr(T,2)}, {vr(T,2)}, {d}, {d} op_sel:[0,{ds},{ds}] op_sel_hi:[1,{ds},{ds}]",
                        f"v_rcp_f32 v{T}, v{T}",
                        f"v_rcp_f32 v{T+1}, v{T+1}",
                        f"v_pk_mul_f32 {vr(A,2)}, {vr(A,2)}, {vr(T,2)}",
                        f"v_cvt_pk_bf16_f32 v{O+2*pair+k}, v{A}, v{A+1}",
                    ])
                for i in range(len(seqs[0])):
                    a(seqs[0][i]); a(seqs[1][i])
            a(f"v_permlane32_swap_b32 v{O}, v{O+2}")
            a(f"v_permlane32_swap_b32 v{O+1}, v{O+3}")
            a(f"v_permlane16_swap_b32 v{O}, v{O+1}")
            a(f"v_permlane16_swap_b32 v{O+2}, v{O+3}")
            if w3 and b == 1:
                a(f"v_mov_b32 v{O+3}, 0")
            a(f"buffer_store_dwordx4 {vr(O,4)}, v7, s[20:23], s12 offen offset:{1024*grp}")
        if b + 1 < NB:
            a("s_add_u32 s12, s12, 32768")
    a("s_endpgm")
```

```python
from common import *
from p0 import xpose_store
G2P = 0
G2R = 49152
G2T = 57344
G2_LDS = 57344 + 9216

def g2_map(a):
    a("s_and_b32 s4, s2, 7")
    a("s_lshl_b32 s4, s4, 2")
    a("s_lshr_b32 s6, s2, 6")
    a("s_add_u32 s4, s4, s6")
    a("s_bfe_u32 s5, s2, 0x30003")

def g2_kernel(a, name, layer):
    xres, hin = XT[2 * layer + 1], HB[layer]
    a.entry(name)
    a("s_cmp_ge_u32 s2, 256")
    a(f"s_cbranch_scc1 {name}_end")
    a("s_load_dwordx2 s[24:25], s[0:1], 120")
    a("s_load_dwordx2 s[26:27], s[0:1], 104")
    a("v_lshrrev_b32 v1, 6, v0")
    a("v_and_b32 v2, 63, v0")
    a("v_readfirstlane_b32 s3, v1")
    g2_map(a)
    a("v_and_b32 v5, 15, v2")
    a("v_lshrrev_b32 v6, 4, v2")
    a("v_lshlrev_b32 v7, 4, v2")
    a("v_lshlrev_b32 v8, 4, v5")
    a("v_lshl_add_u32 v8, v6, 15, v8")
    a(f"s_mul_i32 s6, s3, {11*4*32768}")
    a("s_lshl_b32 s7, s4, 10")
    a("s_add_u32 s6, s6, s7")
    a(f"s_add_u32 s6, s6, {hin}")
    a("s_mul_i32 s8, s5, 44")
    a("s_mul_i32 s9, s3, 11")
    a("s_add_u32 s8, s8, s9")
    a("s_lshl_b32 s8, s8, 12")
    a(f"s_add_u32 s8, s8, {WD}")
    a("v_lshrrev_b32 v9, 3, v2")
    a("v_and_b32 v10, 7, v2")
    a("v_lshlrev_b32 v10, 4, v10")
    a("v_lshl_add_u32 v9, v9, 12, v10")
    a("s_lshl_b32 s10, s5, 18")
    a("s_lshl_b32 s11, s4, 7")
    a("s_add_u32 s12, s10, s11")
    a("s_lshl_b32 s11, s3, 16")
    a("s_add_u32 s10, s12, s11")
    a(f"s_add_u32 s10, s10, {xres}")
    a("s_add_u32 s11, s10, 32768")
    a("s_lshl_b32 s13, s3, 11")
    srd(a, 20, 24, WS_SIZE)
    W = lambda ks, db: 16 * ks + 4 * db
    ACC = lambda tb, db: 16 + 16 * tb + 4 * db
    NR = 11
    Hf = lambda ks, tb: 80 + 16 * (ks % NR) + 4 * tb
    def issue(ks):
        out = [f"s_add_u32 s14, s6, {ks*4*32768}", f"s_add_u32 s15, s8, {ks*4096}"]
        for i in range(4):
            out.append(f"buffer_load_dwordx4 {ar(W(ks,i),4)}, v7, s[20:23], s15 offen offset:{1024*i}")
            out.append(f"buffer_load_dwordx4 {vr(Hf(ks,i),4)}, v8, s[20:23], s14 offen offset:{256*i}")
        return out
    PRE = 6
    for ks in range(PRE):
        for t in issue(ks): a(t)
    a(f"s_add_u32 m0, s13, {G2R}")
    a("buffer_load_dwordx4 v9, s[20:23], s10 offen lds", "res")
    a(f"s_add_u32 m0, s13, {G2R+1024}")
    a("buffer_load_dwordx4 v9, s[20:23], s11 offen lds", "res")
    for ks in range(11):
        fill = issue(ks + PRE) if ks + PRE < 11 else []
        for tb in range(4):
            for db in range(4):
                c = "0" if ks == 0 else vr(ACC(tb, db), 4)
                a(f"v_mfma_f32_16x16x32_bf16 {vr(ACC(tb,db),4)}, {ar(W(ks,db),4)}, {vr(Hf(ks,tb),4)}, {c}")
                if fill: a(fill.pop(0))
    a("v_lshrrev_b32 v9, 2, v5")
    a("v_lshl_add_u32 v9, v6, 3, v9")
    a("v_lshlrev_b32 v9, 7, v9")
    a("v_and_b32 v10, 3, v2")
    a("v_lshl_add_u32 v9, v10, 3, v9")
    a("v_lshl_add_u32 v9, s3, 5, v9")
    a("s_mul_i32 s14, s3, 12288")
    a("v_add_u32 v10, s14, v7")
    for w in range(4):
        if w < 3:
            a(f"s_cmp_lg_u32 s3, {w}")
            a(f"s_cbranch_scc1 {name}_n{w}")
        for tb in range(4):
            if tb == w: continue
            slot = (w - tb - 1) & 3
            for db in range(4):
                a(f"ds_write_b128 v7, {vr(ACC(tb,db),4)} offset:{G2P + tb*12288 + slot*4096 + db*1024}")
        if w != 0:
            for i in range(8):
                a(f"v_mov_b64 {vr(16+2*i,2)}, {vr(ACC(w,0)+2*i,2)}")
        a("s_waitcnt vmcnt(0) lgkmcnt(0)")
        if w < 3:
            a(f"s_branch {name}_j")
            a.label(f"{name}_n{w}")
    a.label(f"{name}_j")
    a("s_barrier")
    for db in range(4):
        a(f"ds_read_b64_tr_b16 {vr(32+2*db,2)}, v9 offset:{G2R + (32*(db//2) + 4*(db%2))*128}")
        for s in range(3):
            a(f"ds_read_b128 {vr(80+16*s+4*db,4)}, v10 offset:{G2P + s*4096 + db*1024}")
    if layer == 0:
        a(f"s_add_u32 s16, s12, {XT[2]}")
        fin = xpose_store(a, G2T, 144, 3, 2, 56, 20, 16, 4096)
        a("v_lshl_add_u32 v11, s3, 4, v5")
        a("v_mul_u32_u24 v12, 144, v11")
        a("v_lshl_add_u32 v12, v6, 4, v12")
        a("v_lshrrev_b32 v13, 5, v2")
        a("v_lshlrev_b32 v13, 13, v13")
        a("v_lshl_add_u32 v13, v11, 2, v13")
        a("s_lshl_b32 s17, s4, 8")
        a(f"s_add_u32 s17, s17, {ST+16384}")
    else:
        srd(a, 28, 26, 2048 * 512 * 2)
        a("v_lshl_add_u32 v11, s3, 4, v5")
        a("v_lshlrev_b32 v11, 10, v11")
        a("v_lshl_add_u32 v11, v6, 4, v11")
        a("s_lshl_b32 s16, s4, 16")
        a("s_lshl_b32 s17, s5, 7")
        a("s_add_u32 s16, s16, s17")
    for db in range(4):
        for p in range(2):
            o = 16 + 4 * db + 2 * p
            a(f"v_lshlrev_b32 v40, 16, v{32+2*db+p}")
            a(f"v_and_b32 v41, 0xffff0000, v{32+2*db+p}")
            a(f"v_pk_add_f32 {vr(o,2)}, {vr(o,2)}, {vr(80+4*db+2*p,2)}")
            a(f"v_pk_add_f32 v[40:41], v[40:41], {vr(96+4*db+2*p,2)}")
            a(f"v_pk_add_f32 {vr(o,2)}, {vr(o,2)}, {vr(112+4*db+2*p,2)}")
            a(f"v_pk_add_f32 {vr(o,2)}, {vr(o,2)}, v[40:41]")
            a(f"v_cvt_pk_bf16_f32 v{44+2*db+p}, v{o}, v{o+1}")
        if db % 2 == 1:
            if layer == 0:
                a(f"ds_write_b128 v12, {vr(44+4*(db//2),4)} offset:{G2T + 64*(db//2)}")
            else:
                a(f"buffer_store_dwordx4 {vr(44+4*(db//2),4)}, v11, s[28:31], s16 offen offset:{64*(db//2)}")
    if layer == 0:
        a("s_waitcnt lgkmcnt(0)")
        a("s_barrier")
        fin()
        a("v_pk_add_f32 v[40:41], v[16:17], v[18:19]")
        a("v_pk_mul_f32 v[42:43], v[16:17], v[16:17]")
        a("v_pk_fma_f32 v[42:43], v[18:19], v[18:19], v[42:43]")
        for i in range(2, 8):
            a(f"v_pk_add_f32 v[40:41], v[40:41], {vr(16+2*i,2)}")
            a(f"v_pk_fma_f32 v[42:43], {vr(16+2*i,2)}, {vr(16+2*i,2)}, v[42:43]")
        a("v_add_f32 v40, v40, v41")
        a("v_add_f32 v42, v42, v43")
        a("v_permlane32_swap_b32 v40, v42")
        a("v_add_f32 v40, v40, v42")
        a("v_mov_b32 v41, v40")
        a("v_permlane16_swap_b32 v40, v41")
        a("v_add_f32 v40, v40, v41")
        a("s_mov_b32 s14, 0xffff")
        a("s_mov_b32 s15, 0xffff")
        a("s_mov_b64 exec, s[14:15]")
        a("buffer_atomic_add_f32 v40, v13, s[20:23], s17 offen")
    a("s_endpgm")
    a.label(f"{name}_end")
    a("s_endpgm")
```

```python
from common import *

def cmul(a, d, x, y):
    a(f"v_pk_mul_f32 {vr(d,2)}, {vr(x,2)}, {vr(y,2)} op_sel:[0,0] op_sel_hi:[0,1]")
    a(f"v_pk_fma_f32 {vr(d,2)}, {vr(x,2)}, {vr(y,2)}, {vr(d,2)} op_sel:[1,1,0] op_sel_hi:[1,0,1] neg_lo:[1,0,0]")

def cexp(a, d, lre, lim, l, t):
    a(f"v_mul_f32 v{t}, {fl(l*LOG2E)}, v{lre}")
    a(f"v_mul_f32 v{t+1}, {fl(l/(2*math.pi))}, v{lim}")
    a(f"v_exp_f32 v{t}, v{t}")
    a(f"v_fract_f32 v{t+1}, v{t+1}")
    a(f"v_cos_f32 v{d}, v{t+1}")
    a(f"v_sin_f32 v{d+1}, v{t+1}")
    a(f"v_mul_f32 v{d}, v{d}, v{t}")
    a(f"v_mul_f32 v{d+1}, v{d+1}, v{t}")

EA, EB, ES, TAB = 0, 11088, 528, 28016
P0_LDS = 30208

def xpose_store(a, T, TS, wv, lane, tmp, srdb, soff, rowbytes, mods=""):
    ad, go, d0 = tmp + 8, tmp + 9, tmp
    a(f"v_lshrrev_b32 v{ad}, 4, v{lane}")
    a(f"v_lshlrev_b32 v{ad}, 3, v{ad}")
    a(f"v_bfe_u32 v{go}, v{lane}, 2, 2")
    a(f"v_add_u32 v{ad}, v{ad}, v{go}")
    a(f"v_mul_u32_u24 v{ad}, {TS}, v{ad}")
    a(f"v_and_b32 v{go}, 3, v{lane}")
    a(f"v_lshl_add_u32 v{ad}, v{go}, 3, v{ad}")
    a(f"v_lshl_add_u32 v{ad}, s{wv}, 5, v{ad}")
    a(f"v_and_b32 v{go}, 15, v{lane}")
    a(f"v_lshl_add_u32 v{go}, s{wv}, 4, v{go}")
    a(f"v_mul_u32_u24 v{go}, {rowbytes}, v{go}")
    a(f"v_and_b32 v{tmp+10}, 0x30, v{lane}")
    a(f"v_add_u32 v{go}, v{go}, v{tmp+10}")
    def second():
        a(f"ds_read_b64_tr_b16 {vr(d0,2)}, v{ad} offset:{T}")
        a(f"ds_read_b64_tr_b16 {vr(d0+2,2)}, v{ad} offset:{T+4*TS}")
        a(f"ds_read_b64_tr_b16 {vr(d0+4,2)}, v{ad} offset:{T+32*TS}")
        a(f"ds_read_b64_tr_b16 {vr(d0+6,2)}, v{ad} offset:{T+36*TS}")
        a(f"buffer_store_dwordx4 {vr(d0,4)}, v{go}, {sr(srdb,4)}, s{soff} offen {mods}")
        a(f"buffer_store_dwordx4 {vr(d0+4,4)}, v{go}, {sr(srdb,4)}, s{soff} offen offset:64 {mods}")
    return second

def kgen(a):
    a("s_load_dwordx16 s[4:19], s[0:1], 8")
    a("s_load_dwordx2 s[24:25], s[0:1], 120")
    a("v_lshrrev_b32 v1, 6, v0")
    a("v_and_b32 v2, 127, v0")
    a("v_readfirstlane_b32 s3, v1")
    a("s_lshl_b32 s26, s2, 8")
    a("v_lshl_add_u32 v3, v2, 1, s26")
    a("s_lshl_b32 s27, s2, 1")
    a("v_mov_b32 v4, s27")
    a("global_load_ushort v5, v4, s[16:17]")
    a("global_load_ushort v6, v3, s[4:5]")
    a("global_load_ushort v7, v3, s[6:7]")
    a("global_load_ushort v8, v3, s[8:9]")
    a("global_load_ushort v9, v3, s[10:11]")
    a("global_load_ushort v10, v3, s[12:13]")
    a("global_load_ushort v11, v3, s[14:15]")
    srd(a, 20, 24, WS_SIZE)
    a("v_lshlrev_b32 v12, 3, v0")
    a("v_sub_u32 v12, 2047, v12")
    a("v_cmp_gt_i32 vcc, 257, v12")
    for j in range(9):
        a(f"v_subrev_u32 v13, {j}, v12")
        a("v_cvt_f32_i32 v14, v13")
        a("v_cvt_pk_bf16_f32 v14, v14, v14")
        a("v_and_b32 v14, 0xffff, v14")
        a("v_subrev_u32 v14, 0x4280, v14")
        a("v_cndmask_b32 v13, v14, v13, vcc")
        a(f"v_lshlrev_b32 v{100+j}, 1, v13")
    a("v_mov_b32 v13, 0")
    a(f"v_mov_b32 v14, {TAB-4}")
    a("ds_write_b32 v14, v13")
    a("v_lshlrev_b32 v2, 2, v2")
    a("v_lshlrev_b32 v5, 16, v5")
    a(f"v_mul_f32 v5, {fl(LOG2E)}, v5")
    a("v_exp_f32 v5, v5")
    a("v_cvt_pk_bf16_f32 v5, v5, v5")
    a("v_lshlrev_b32 v5, 16, v5")
    a("v_lshlrev_b32 v6, 16, v6")
    a("v_lshlrev_b32 v7, 16, v7")
    a("v_mul_f32 v6, v5, v6")
    a("v_mul_f32 v7, v5, v7")
    a("s_waitcnt vmcnt(0) lgkmcnt(0)")
    a("s_cmp_ge_u32 s3, 2")
    a("s_cbranch_scc1 kg_aside")
    P = lambda c: 16 + 2 * c
    def putB(c):
        a(f"v_cvt_pk_bf16_f32 v{12+(c&1)}, v{P(c)}, v{P(c)+1}")
        a(f"ds_write_b32 v2, v{12+(c&1)} offset:{EB+c*ES}")
    cexp(a, P(1), 6, 7, 8, 14)
    a(f"v_mov_b32 v12, 0x3f80")
    a(f"ds_write_b32 v2, v12 offset:{EB}")
    putB(1)
    k = 1
    while k < 16:
        cmul(a, P(2 * k), P(k), P(k))
        k *= 2
        putB(k)
        for c in range(1, k):
            cmul(a, P(k + c), P(c), P(k))
            putB(k + c)
    a("s_waitcnt lgkmcnt(0)")
    a("s_branch kg_join")
    a.label("kg_aside")
    R = lambda r: 16 + 2 * r
    W, W2, W4, Y, Y2, Y4 = 60, 62, 64, 66, 68, 70
    cnt = [0]
    def putA(r):
        t = 12 + (cnt[0] & 1); cnt[0] += 1
        a(f"v_cvt_pk_bf16_f32 v{t}, v{R(r)}, -v{R(r)+1}")
        a(f"ds_write_b32 v2, v{t} offset:{EA+r*ES}")
    cexp(a, W, 6, 7, 1, 14)
    cexp(a, Y, 6, 7, 256, 72)
    for i in range(8, 12):
        a(f"v_lshlrev_b32 v{i}, 16, v{i}")
    a("v_mul_f32 v8, v5, v8")
    a("v_mul_f32 v9, v5, v9")
    cmul(a, R(0), 8, 10); cmul(a, W2, W, W); cmul(a, Y2, Y, Y); putA(0)
    cmul(a, R(1), R(0), W); cmul(a, W4, W2, W2); cmul(a, Y4, Y2, Y2); putA(1)
    seq = [(2, 0, W2), (3, 1, W2), (4, 0, W4), (5, 1, W4), (6, 2, W4), (7, 3, W4),
           (8, 0, Y), (9, 2, Y), (10, 4, Y), (11, 6, Y), (12, 0, Y2), (13, 4, Y2), (14, 8, Y2), (15, 10, Y2),
           (16, 0, Y4), (17, 8, Y4), (18, 12, Y4), (19, 14, Y4), (20, 16, Y4)]
    for d, s, m in seq:
        cmul(a, R(d), R(s), m); putA(d)
    a("s_waitcnt lgkmcnt(0)")
    a.label("kg_join")
    a("v_and_b32 v1, 63, v0")
    a("v_and_b32 v3, 15, v1")
    a("v_lshrrev_b32 v4, 4, v1")
    a(f"v_mul_u32_u24 v5, {ES}, v3")
    a("v_lshl_add_u32 v5, v4, 4, v5")
    a("s_lshr_b32 s26, s3, 1")
    a("s_and_b32 s27, s3, 1")
    a(f"s_mul_i32 s28, s26, {16*ES}")
    a(f"s_mul_i32 s29, s27, {16*ES}")
    a("v_add_u32 v6, s28, v5")
    a("v_add_u32 v7, s29, v5")
    a("s_barrier")
    for ks in range(8):
        a(f"ds_read_b128 {vr(16+8*ks,4)}, v6 offset:{EA+64*ks}")
        a(f"ds_read_b128 {vr(20+8*ks,4)}, v7 offset:{EB+64*ks}")
    a("v_lshl_add_u32 v3, s27, 4, v3")
    for ks in range(8):
        a(f"v_mfma_f32_16x16x32_bf16 v[8:11], {vr(16+8*ks,4)}, {vr(20+8*ks,4)}, {'v[8:11]' if ks else '0'}")
    a("s_cmp_eq_u32 s26, 1")
    a("s_cbranch_scc1 kg_mt1")
    a("v_lshlrev_b32 v12, 3, v3")
    a("v_lshl_add_u32 v12, v4, 2, v12")
    a("v_lshlrev_b32 v13, 2, v3")
    a("v_add_u32 v13, 256, v13")
    a("v_cmp_eq_u32 vcc, 2, v4")
    a("v_cndmask_b32 v12, v12, v13, vcc")
    a("v_lshlrev_b32 v13, 1, v3")
    a("v_add_u32 v13, 384, v13")
    a("v_cmp_eq_u32 vcc, 3, v4")
    a("v_cndmask_b32 v12, v12, v13, vcc")
    a("v_cndmask_b32 v13, 2, 64, vcc")
    a("v_add_u32 v13, v12, v13")
    a("v_lshlrev_b32 v12, 1, v12")
    a("v_lshlrev_b32 v13, 1, v13")
    a("v_cvt_pk_bf16_f32 v8, v8, v9")
    a("v_cvt_pk_bf16_f32 v10, v10, v11")
    a(f"ds_write_b32 v12, v8 offset:{TAB}")
    a(f"ds_write_b32 v13, v10 offset:{TAB}")
    a("s_waitcnt lgkmcnt(0)")
    a("s_branch kg_tab")
    a.label("kg_mt1")
    a("v_lshl_add_u32 v12, v4, 7, v3")
    a("v_lshlrev_b32 v12, 1, v12")
    a("v_cvt_pk_bf16_f32 v8, v8, v9")
    a("v_cvt_pk_bf16_f32 v10, v10, v11")
    a(f"ds_write_b16 v12, v8 offset:{TAB+1024}")
    a(f"ds_write_b16_d16_hi v12, v8 offset:{TAB+1024+64}")
    a(f"ds_write_b16 v12, v10 offset:{TAB+1024+128}")
    a(f"ds_write_b16_d16_hi v12, v10 offset:{TAB+1024+192}")
    a("s_waitcnt lgkmcnt(0)")
    a.label("kg_tab")
    a("s_barrier")
    for j in range(8):
        a(f"ds_read_u16 v{16+j}, v{100+j} offset:{TAB}")
    a("v_add_u32 v108, 2, v108")
    a(f"ds_read_u16 v24, v108 offset:{TAB-2}")
    a(f"s_mul_i32 s26, s2, {KROW}")
    a(f"s_add_u32 s26, s26, {KR}")
    a(f"s_add_u32 s27, s26, {KODD}")
    a("v_lshlrev_b32 v1, 4, v0")
    for j in range(4):
        a(f"v_lshl_or_b32 v{28+j}, v{17+2*j}, 16, v{16+2*j}")
    a("buffer_store_dwordx4 v[28:31], v1, s[20:23], s26 offen")
    for j in range(4):
        a(f"v_lshl_or_b32 v{32+j}, v{18+2*j}, 16, v{17+2*j}")
    a("buffer_store_dwordx4 v[32:35], v1, s[20:23], s27 offen")
    a("s_cmp_lg_u32 s3, 0")
    a("s_cbranch_scc1 p0_end")
    a("v_add_u32 v1, 4096, v1")
    for j in range(4):
        a(f"v_mov_b32 v{36+j}, 0")
    a("s_mov_b64 exec, 15")
    a("buffer_store_dwordx4 v[36:39], v1, s[20:23], s26 offen")
    a("buffer_store_dwordx4 v[36:39], v1, s[20:23], s27 offen")
    a("s_endpgm")

def misc(a):
    a("s_load_dwordx2 s[4:5], s[0:1], 0")
    a("s_load_dwordx4 s[8:11], s[0:1], 80")
    a("s_load_dwordx2 s[12:13], s[0:1], 96")
    a("s_load_dwordx2 s[24:25], s[0:1], 120")
    a("s_sub_u32 s2, s2, 512")
    a("v_lshrrev_b32 v1, 6, v0")
    a("v_and_b32 v2, 63, v0")
    a("v_readfirstlane_b32 s3, v1")
    a("s_lshr_b32 s14, s2, 3")
    a("s_and_b32 s15, s2, 7")
    a("s_lshl_b32 s16, s14, 16")
    a("s_lshl_b32 s17, s15, 7")
    a("s_add_u32 s16, s16, s17")
    a("v_lshrrev_b32 v3, 3, v0")
    a("v_and_b32 v4, 7, v0")
    a("v_lshlrev_b32 v5, 10, v3")
    a("v_lshl_add_u32 v5, v4, 4, v5")
    a("v_add_u32 v5, s16, v5")
    a("v_add_u32 v6, 0x8000, v5")
    a("s_lshl_b32 s17, s2, 13")
    a("s_lshl_b32 s18, s3, 11")
    a("s_add_u32 s17, s17, s18")
    a("v_lshl_add_u32 v7, v2, 4, s17")
    a("global_load_dwordx4 v[16:19], v5, s[4:5]")
    a("global_load_dwordx4 v[20:23], v6, s[4:5]")
    a("global_load_dwordx4 v[24:27], v7, s[4:5]")
    a("global_load_dwordx4 v[28:31], v7, s[4:5] offset:1024")
    srd(a, 20, 24, WS_SIZE)
    srd(a, 28, 8, 512 * 1376 * 2)
    srd(a, 32, 10, 512 * 1376 * 2)
    srd(a, 36, 12, 512 * 1376 * 2)
    a("s_lshr_b32 s40, s2, 4")
    a("s_and_b32 s41, s2, 15")
    a(f"s_mul_i32 s42, s41, {32*2752}")
    a("s_mul_i32 s43, s40, 172")
    a("s_add_u32 s42, s42, s43")
    a("v_and_b32 v8, 3, v0")
    a("v_lshrrev_b32 v9, 2, v0")
    a(f"v_mul_u32_u24 v10, {4*2752}, v8")
    a("v_lshl_add_u32 v10, v9, 2, v10")
    for j in range(8):
        row = j if j < 4 else 12 + j
        a(f"s_add_u32 s43, s42, {row*2752}")
        a(f"buffer_load_dword v{32+j}, v10, s[28:31], s43 offen")
        a(f"buffer_load_dword v{40+j}, v10, s[32:35], s43 offen")
    a("s_mul_i32 s44, s2, 5958")
    a("s_lshr_b32 s44, s44, 16")
    a("s_mul_i32 s45, s44, 11")
    a("s_sub_u32 s45, s2, s45")
    a("s_mul_i32 s46, s44, 86")
    a("s_lshl_b32 s47, s45, 3")
    a("s_add_u32 s46, s46, s47")
    a("s_lshl_b32 s46, s46, 10")
    a("s_add_u32 s47, s46, 4096")
    a("v_lshlrev_b32 v11, 2, v0")
    for j in range(8):
        a(f"buffer_load_dword v{48+j}, v11, s[36:39], s{46+j//4} offen offset:{(j%4)*1024}")
    TS = 144
    a(f"v_mul_u32_u24 v12, {TS}, v3")
    a("v_lshl_add_u32 v12, v4, 4, v12")
    a("s_lshl_b32 s16, s15, 18")
    a("s_lshl_b32 s17, s14, 7")
    a("s_add_u32 s16, s16, s17")
    a(f"s_add_u32 s16, s16, {XT[0]}")
    fin = xpose_store(a, 0, TS, 3, 2, 56, 20, 16, 4096)
    a("ds_write_b128 v12, v[16:19]")
    a(f"ds_write_b128 v12, v[20:23] offset:{32*TS}")
    a("s_waitcnt lgkmcnt(0)")
    a("s_barrier")
    fin()
    for t in range(2):
        s, q = 70 + t, 72 + t
        for k in range(4):
            src = 24 + 4 * t + k
            a(f"v_lshlrev_b32 v74, 16, v{src}")
            a(f"v_and_b32 v75, 0xffff0000, v{src}")
            if k == 0:
                a(f"v_add_f32 v{s}, v74, v75")
                a(f"v_mul_f32 v{q}, v74, v74")
            else:
                a(f"v_add_f32 v{s}, v{s}, v74")
                a(f"v_fmac_f32 v{q}, v74, v74")
                a(f"v_add_f32 v{s}, v{s}, v75")
            a(f"v_fmac_f32 v{q}, v75, v75")
    a("v_permlane32_swap_b32 v70, v72")
    a("v_permlane32_swap_b32 v71, v73")
    a("v_add_f32 v70, v70, v72")
    a("v_add_f32 v71, v71, v73")
    a("v_permlane16_swap_b32 v70, v71")
    a("v_add_f32 v70, v70, v71")
    for k in (8, 4, 2, 1):
        a(f"v_add_f32_dpp v70, v70, v70 row_ror:{k} row_mask:0xf bank_mask:0xf")
    a("v_lshrrev_b32 v71, 5, v2")
    a("v_lshlrev_b32 v71, 13, v71")
    a("v_bfe_u32 v72, v2, 4, 1")
    a("v_lshl_add_u32 v71, v72, 2, v71")
    a("s_lshl_b32 s17, s2, 5")
    a("s_lshl_b32 s18, s3, 3")
    a("s_add_u32 s17, s17, s18")
    a(f"s_add_u32 s17, s17, {ST}")
    a("s_add_u32 s18, s17, 16384")
    a("v_mov_b32 v72, 0")
    a("s_mov_b32 s48, 0x00010001")
    a("s_mov_b32 s49, 0x00010001")
    a("s_mov_b64 exec, s[48:49]")
    a("buffer_store_dword v70, v71, s[20:23], s17 offen")
    a("buffer_store_dword v72, v71, s[20:23], s18 offen")
    a("s_mov_b64 exec, -1")
    a("s_mov_b32 s50, 0x05040100")
    a("s_mov_b32 s51, 0x07060302")
    a("s_cmp_eq_u32 s45, 10")
    a("s_cselect_b32 s52, 0, -1")
    a("v_and_b32 v54, s52, v54")
    a("v_and_b32 v55, s52, v55")
    for k in range(4):
        a(f"v_perm_b32 v{56+k}, v{49+2*k}, v{48+2*k}, s50")
        a(f"v_perm_b32 v{60+k}, v{49+2*k}, v{48+2*k}, s51")
    a("v_lshrrev_b32 v64, 5, v0")
    a(f"v_mul_u32_u24 v64, {44*4096}, v64")
    a("v_bfe_u32 v65, v0, 4, 1")
    a("v_lshl_add_u32 v64, v65, 11, v64")
    a("v_bfe_u32 v65, v0, 1, 1")
    a("v_lshl_add_u32 v64, v65, 10, v64")
    a("v_bfe_u32 v65, v0, 2, 2")
    a("v_lshl_add_u32 v64, v65, 6, v64")
    a("v_and_b32 v65, 1, v0")
    a("v_lshl_add_u32 v64, v65, 5, v64")
    a("s_lshr_b32 s52, s2, 2")
    a("s_lshl_b32 s52, s52, 12")
    a("s_and_b32 s53, s2, 3")
    a("s_lshl_b32 s53, s53, 8")
    a("s_add_u32 s52, s52, s53")
    a(f"s_add_u32 s52, s52, {WD}")
    a("s_cmp_ge_u32 s2, 176")
    a(f"s_cselect_b32 s52, {WS_SIZE}, s52")
    a("buffer_store_dwordx4 v[56:59], v64, s[20:23], s52 offen")
    a("buffer_store_dwordx4 v[60:63], v64, s[20:23], s52 offen offset:16")
    a("s_cmp_eq_u32 s3, 3")
    a("s_cbranch_scc1 p0_end")
    a("v_cmp_eq_u32 vcc, 43, v9")
    a("v_mov_b32 v64, 0x3f80")
    for j in range(8):
        a(f"v_cndmask_b32 v{32+j}, v{32+j}, v64, vcc")
        a(f"v_cndmask_b32 v{40+j}, v{40+j}, 0, vcc")
    for m in range(2):
        for j in range(8):
            src = 32 + 8 * m + j
            if j == 0:
                a(f"v_lshlrev_b32 v{76+2*m}, 16, v{src}")
                a(f"v_and_b32 v{77+2*m}, 0xffff0000, v{src}")
            else:
                a(f"v_lshlrev_b32 v74, 16, v{src}")
                a(f"v_and_b32 v75, 0xffff0000, v{src}")
                a(f"v_pk_add_f32 {vr(76+2*m,2)}, {vr(76+2*m,2)}, v[74:75]")
    for qp in ("[1,0,3,2]", "[2,3,0,1]"):
        for k in range(4):
            a(f"v_add_f32_dpp v{76+k}, v{76+k}, v{76+k} quad_perm:{qp} row_mask:0xf bank_mask:0xf")
    for m in range(2):
        for k in range(4):
            a(f"v_perm_b32 v{80+8*m+k}, v{33+8*m+2*k}, v{32+8*m+2*k}, s50")
            a(f"v_perm_b32 v{84+8*m+k}, v{33+8*m+2*k}, v{32+8*m+2*k}, s51")
    a("v_lshrrev_b32 v64, 2, v9")
    a("v_lshlrev_b32 v64, 14, v64")
    a("v_lshl_add_u32 v64, v8, 8, v64")
    a("v_and_b32 v65, 3, v9")
    a("v_lshl_add_u32 v64, v65, 6, v64")
    a(f"s_mul_i32 s52, s40, {11*16384}")
    a("s_lshl_b32 s53, s41, 10")
    a("s_add_u32 s52, s52, s53")
    a(f"s_add_u32 s52, s52, {WGU}")
    a("v_lshlrev_b32 v65, 4, v9")
    a("s_mul_i32 s53, s2, 704")
    a(f"s_add_u32 s53, s53, {CSP}")
    a("v_cmp_gt_u32 vcc, 176, v0")
    a("s_and_b64 exec, exec, vcc")
    for k in range(4):
        a(f"buffer_store_dwordx4 {vr(80+4*k,4)}, v64, s[20:23], s52 offen offset:{16*k}")
    a("buffer_store_dwordx4 v[76:79], v65, s[20:23], s53 offen")
    a("s_endpgm")

def p0_kernel(a):
    a.entry("p0_kernel")
    a("s_cmp_ge_u32 s2, 768")
    a("s_cbranch_scc1 p0_end")
    a("s_cmp_ge_u32 s2, 512")
    a("s_cbranch_scc1 p0_misc")
    kgen(a)
    a.label("p0_misc")
    misc(a)
    a.label("p0_end")
    a("s_endpgm")
```

```python
import sys
from asmlib import Asm
from common import *
import p0, conv, g1, g2
def kd(name, vg, acc, sg=64):
    return f""".p2align 6
.amdhsa_kernel {name}
  .amdhsa_next_free_vgpr {vg}
  .amdhsa_next_free_sgpr {sg}
  .amdhsa_accum_offset {acc}
  .amdhsa_group_segment_fixed_size 0
  .amdhsa_kernarg_size 128
  .amdhsa_user_sgpr_count 2
  .amdhsa_user_sgpr_kernarg_segment_ptr 1
  .amdhsa_system_sgpr_workgroup_id_x 1
.end_amdhsa_kernel
"""
def build(extra=0):
    a = Asm()
    p0.p0_kernel(a)
    L = [("p0_kernel", 768, p0.P0_LDS, 112, 112)]
    for l in range(2):
        conv.conv_kernel(a, f"conv{l}_kernel", l); L.append((f"conv{l}_kernel", 256, conv.CONV_LDS, 256, 128))
        g1.g1_kernel(a, f"g1_{l}_kernel", l); L.append((f"g1_{l}_kernel", 256, g1.G1_LDS, 448, 256))
        g2.g2_kernel(a, f"g2_{l}_kernel", l); L.append((f"g2_{l}_kernel", 256, g2.G2_LDS, 432, 256))
    if extra:
        a.entry("nop_kernel"); a("s_endpgm")
    body = a.finalize()
    ref = open("interleave_layers__ssm_conv_s4__geglu_ffn__prompt.s.ref").read().split("\n")
    head = [x for x in ref if x.startswith(";") and "@launch" not in x and "Override" not in x and "grid=ceil" not in x]
    txt = "\n".join(head) + "\n"
    for n, g, lds, vg, acc in L:
        txt += f"; @launch kernel={n} grid=({g},1,1) block=(256,1,1) lds={lds}\n"
    for i in range(extra):
        txt += f"; @launch kernel=nop_kernel grid=(256,1,1) block=(256,1,1) lds=0\n"
    txt += '.amdgcn_target "amdgcn-amd-amdhsa--gfx950"\n.text\n' + body + '.section .rodata,"a"\n'
    for n, g, lds, vg, acc in L:
        txt += kd(n, vg, acc)
    if extra:
        txt += kd("nop_kernel", 8, 8)
    print("nops inserted:", a.nops, file=sys.stderr)
    return txt
if __name__ == "__main__":
    out = sys.argv[1]
    extra = int(sys.argv[2]) if len(sys.argv) > 2 else 0
    open(out, "w").write(build(extra))
```

```python
import sys
from asmlib import Asm
from common import *
import p0, conv, g1, g2
def kd(name, vg, acc, sg=64):
    return f""".p2align 6
.amdhsa_kernel {name}
  .amdhsa_next_free_vgpr {vg}
  .amdhsa_next_free_sgpr {sg}
  .amdhsa_accum_offset {acc}
  .amdhsa_group_segment_fixed_size 0
  .amdhsa_kernarg_size 128
  .amdhsa_user_sgpr_count 2
  .amdhsa_user_sgpr_kernarg_segment_ptr 1
  .amdhsa_system_sgpr_workgroup_id_x 1
.end_amdhsa_kernel
"""
def build(extra=0, dup=None):
    a = Asm()
    p0.p0_kernel(a)
    L = [("p0_kernel", 768, p0.P0_LDS, 112, 112)]
    for l in range(2):
        conv.conv_kernel(a, f"conv{l}_kernel", l); L.append((f"conv{l}_kernel", 256, conv.CONV_LDS, 256, 128))
        g1.g1_kernel(a, f"g1_{l}_kernel", l); L.append((f"g1_{l}_kernel", 256, g1.G1_LDS, 448, 256))
        g2.g2_kernel(a, f"g2_{l}_kernel", l); L.append((f"g2_{l}_kernel", 256, g2.G2_LDS, 432, 256))
    if extra:
        a.entry("nop_kernel"); a("s_endpgm")
    body = a.finalize()
    ref = open("interleave_layers__ssm_conv_s4__geglu_ffn__prompt.s.ref").read().split("\n")
    head = [x for x in ref if x.startswith(";") and "@launch" not in x and "Override" not in x and "grid=ceil" not in x]
    txt = "\n".join(head) + "\n"
    for n, g, lds, vg, acc in L:
        for _ in range(1 + (4 if dup == n else 0)):
            txt += f"; @launch kernel={n} grid=({g},1,1) block=(256,1,1) lds={lds}\n"
    for i in range(extra):
        txt += f"; @launch kernel=nop_kernel grid=(256,1,1) block=(256,1,1) lds=0\n"
    txt += '.amdgcn_target "amdgcn-amd-amdhsa--gfx950"\n.text\n' + body + '.section .rodata,"a"\n'
    for n, g, lds, vg, acc in L:
        txt += kd(n, vg, acc)
    if extra:
        txt += kd("nop_kernel", 8, 8)
    print("nops inserted:", a.nops, file=sys.stderr)
    return txt
if __name__ == "__main__":
    out = sys.argv[1]
    extra = int(sys.argv[2]) if len(sys.argv) > 2 else 0
    open(out, "w").write(build(extra, sys.argv[3] if len(sys.argv) > 3 else None))
```
